```python
import torch

def _softmax(x, axis=-1):
    return torch.softmax(x, dim=axis)
def _gelu(x):
    return torch.nn.functional.gelu(x, approximate="tanh")
def _silu(x):
    return torch.nn.functional.silu(x)
def _sigmoid(x):
    return torch.sigmoid(x)
def _layernorm(x, axis=-1, eps=1e-5):
    m = x.mean(dim=axis, keepdim=True)
    v = x.var(dim=axis, keepdim=True, unbiased=False)
    return (x - m) / torch.sqrt(v + eps)
def _scatter_add(tgt, idx, src, axis=0):
    return tgt.clone().index_add_(axis, idx, src)
def _segment_sum(src, seg, n):
    out = torch.zeros((n,) + src.shape[1:], dtype=src.dtype)
    return out.index_add_(0, seg, src)
def _pad(x, pw):
    flat = tuple(v for pair in reversed(pw) for v in pair)
    return torch.nn.functional.pad(x, flat)

kernel_name = 'parallel_sum__sliding_block_cached__glu_gated_glu__decode'

def setup_inputs():

    _w = (lambda a: (lambda t: t.to(torch.bfloat16) if t.is_floating_point() else t)(torch.as_tensor(a)))
    def _A_setup():
        B, Sq, D = 1, 1, 640
        Hq, Hkv, Sk, Dh = 32, 32, 32768, 128
        assert Hq % Hkv == 0, (Hq, Hkv)
        return {
            "x": _w((lambda *s: torch.randn(*s, dtype=torch.bfloat16) * 0.05)(B, Sq, D)),
            "k_cache": _w((lambda *s: torch.randn(*s, dtype=torch.bfloat16) * 3.2)(B, Hkv, Sk, Dh)),
            "v_cache": _w((lambda *s: torch.randn(*s, dtype=torch.bfloat16) * 1.6)(B, Hkv, Sk, Dh)),
            "wq": _w((lambda *s: torch.randn(*s, dtype=torch.bfloat16) * 3.2)(D, Hq * Dh) * (D ** -0.5)),
            "wo": _w((lambda *s: torch.randn(*s, dtype=torch.bfloat16) * 1.6)(Hq * Dh, D) * ((Hq * Dh) ** -0.5)),
        }
    _A_in = _A_setup()

    def _B_setup():
        B, S, D, F = 1, 1, 640, 1728
        return {
            "x": _w((lambda *s: torch.randn(*s, dtype=torch.bfloat16) * 0.05)(B, S, D)),
            "w_gate": _w((lambda *s: torch.randn(*s, dtype=torch.bfloat16) * 0.2)(D, F)),
            "w_up": _w((lambda *s: torch.randn(*s, dtype=torch.bfloat16) * 0.05)(D, F)),
            "w_down": _w((lambda *s: torch.randn(*s, dtype=torch.bfloat16) * 0.05)(F, D)),
        }
    _B_in = _B_setup()

    return {
        "A_x": _A_in["x"],
        "A_k_cache": _A_in["k_cache"],
        "A_v_cache": _A_in["v_cache"],
        "A_wq": _A_in["wq"],
        "A_wo": _A_in["wo"],
        "B_x": _B_in["x"],
        "B_w_gate": _B_in["w_gate"],
        "B_w_up": _B_in["w_up"],
        "B_w_down": _B_in["w_down"],
    }

def reference(A_x, A_k_cache, A_v_cache, A_wq, A_wo, B_x, B_w_gate, B_w_up, B_w_down):
    def _A_ref(x, k_cache, v_cache, wq, wo):
        B, Sq, D = x.shape
        Hq, Dh = 32, 128
        Hkv, Sk = k_cache.shape[1], k_cache.shape[2]
        W = min(4096, max(256, Sk // 4))
        rep = Hq // Hkv
        q = (lambda x, *d: x.permute(*d))((x @ wq).reshape(B, Sq, Hq, Dh), 0, 2, 1, 3)
        k = (lambda x, n, axis: torch.repeat_interleave(x, n, dim=axis))(k_cache[:, :, Sk - W:, :], rep, axis=1)
        v = (lambda x, n, axis: torch.repeat_interleave(x, n, dim=axis))(v_cache[:, :, Sk - W:, :], rep, axis=1)
        scores = torch.einsum("bhqd,bhkd->bhqk", q, k) * (Dh ** -0.5)
        p = _softmax(scores, axis=-1)
        o = torch.einsum("bhqk,bhkd->bhqd", p, v)
        return (lambda x, *d: x.permute(*d))(o, 0, 2, 1, 3).reshape(B, Sq, Hq * Dh) @ wo

    def _B_ref(x, w_gate, w_up, w_down):
        g = torch.einsum("bsd,df->bsf", x, w_gate)
        u = torch.einsum("bsd,df->bsf", x, w_up)
        h = _sigmoid(g) * u
        return torch.einsum("bsf,fd->bsd", h, w_down)

    x = A_x
    xn = _layernorm(x, axis=-1)
    return x + _A_ref(xn, A_k_cache, A_v_cache, A_wq, A_wo) + _B_ref(xn, B_w_gate, B_w_up, B_w_down)
```

```python
KNAME = "parallel_sum__sliding_block_cached__glu_gated_glu__decode_kernel"
HDR = open("parallel_sum__sliding_block_cached__glu_gated_glu__decode.s.ref").read().split("; Override launch")[0]

def gen(nw=16, vg=128, nper=16, ninst=1024, delay=60, prefetch=False):
    L = []
    A = L.append
    A(HDR.rstrip())
    A(f"; @launch grid=(256,1,1) block=({nw*64},1,1) lds=0")
    A('.amdgcn_target "amdgcn-amd-amdhsa--gfx950"')
    A(".text"); A(f".globl {KNAME}"); A(".p2align 8"); A(f".type {KNAME},@function"); A(f"{KNAME}:")
    A("s_cmp_ge_u32 s2, 256"); A("s_cbranch_scc1 L_end")
    A("s_memrealtime s[80:81]")
    A("s_load_dwordx4 s[4:7], s[0:1], 8")
    A("s_load_dwordx2 s[46:47], s[0:1], 88")
    A("v_lshrrev_b32 v1, 6, v0")
    A("s_nop 0")
    A("v_readfirstlane_b32 s3, v1")
    A("v_and_b32 v2, 63, v0")
    A("s_and_b32 s50, s2, 31")
    A("s_lshr_b32 s51, s2, 5")
    A("s_waitcnt lgkmcnt(0)")
    def srd(d, b, size):
        A(f"s_mov_b32 s{d}, s{b}"); A(f"s_mov_b32 s{d+1}, s{b+1}"); A(f"s_mov_b32 s{d+2}, {size}"); A(f"s_mov_b32 s{d+3}, 0x00020000")
    srd(16, 4, 0x10000000); srd(20, 6, 0x10000000); srd(52, 46, 0x40000000)
    A("s_lshl_b32 s56, s50, 23"); A("s_add_u32 s56, s56, 0x700000")
    A("s_lshl_b32 s57, s51, 17"); A("s_add_u32 s56, s56, s57")
    A("v_lshlrev_b32 v3, 4, v2")
    A("s_mul_i32 s58, s2, 37")
    A(f"s_cmp_eq_u32 s3, 0"); A("s_cbranch_scc1 L_probe")
    reg = 16
    for srd_ in ("s[16:19]", "s[20:23]"):
        for n in range(nper // 2):
            A(f"s_add_u32 s59, s3, {n*nw}")
            A("s_add_u32 s59, s59, s58"); A("s_and_b32 s59, s59, 127"); A("s_lshl_b32 s59, s59, 10"); A("s_add_u32 s59, s59, s56")
            A(f"buffer_load_dwordx4 v[{reg}:{reg+3}], v3, {srd_}, s59 offen nt"); reg += 4
    A("s_waitcnt vmcnt(0)")
    A("s_memrealtime s[82:83]")
    A("s_branch L_fin")
    A("L_probe:")
    A("s_setprio 3")
    if prefetch:
        A("s_getpc_b64 s[70:71]")
        A("L_pc:")
        A("s_add_u32 s70, s70, L_code-L_pc"); A("s_addc_u32 s71, s71, 0")
        for i in range(ninst * 8 // 1024):
            A(f"v_add_u32 v4, {i*1024}, v3")
            A(f"global_load_dwordx4 v[16:19], v4, s[70:71]")
        A("s_waitcnt vmcnt(0)")
    for i in range(delay): A("s_sleep 1")
    A("s_mov_b32 s60, 0")
    A("L_code:")
    A("s_memtime s[84:85]")
    A("s_waitcnt lgkmcnt(0)")
    for i in range(ninst):
        A(f"v_add3_u32 v{16 + i % 32}, v{16 + (i+7) % 32}, v3, v2")
    A("s_memtime s[86:87]")
    A("s_waitcnt lgkmcnt(0)")
    A("s_sub_u32 s88, s86, s84")
    A("s_cmp_eq_u32 s60, 0")
    A("s_cbranch_scc0 L_second")
    A("s_mov_b32 s80, s88"); A("s_mov_b32 s81, 0")
    A("s_mov_b32 s60, 1")
    A("s_branch L_code")
    A("L_second:")
    A("s_mov_b32 s82, s88"); A("s_mov_b32 s83, 0")
    A("L_fin:")
    A("s_waitcnt lgkmcnt(0)")
    A(f"s_mul_i32 s59, s2, {nw}"); A("s_add_u32 s59, s59, s3"); A("s_lshl_b32 s59, s59, 4"); A("s_add_u32 s59, s59, 0x20000000")
    A("v_mov_b32 v8, s80"); A("v_mov_b32 v9, s81"); A("v_mov_b32 v10, s82"); A("v_mov_b32 v11, s83")
    A("v_mov_b32 v12, 0")
    A("v_cmp_eq_u32 vcc, 0, v2"); A("s_and_saveexec_b64 s[60:61], vcc")
    A("buffer_store_dwordx4 v[8:11], v12, s[52:55], s59 offen")
    A("L_end:")
    A("s_endpgm")
    A('.section .rodata,"a"'); A(".p2align 6"); A(f".amdhsa_kernel {KNAME}")
    A(f"  .amdhsa_next_free_vgpr {vg}"); A("  .amdhsa_next_free_sgpr 96"); A(f"  .amdhsa_accum_offset {vg}")
    A("  .amdhsa_group_segment_fixed_size 0"); A("  .amdhsa_kernarg_size 96"); A("  .amdhsa_user_sgpr_count 2")
    A("  .amdhsa_user_sgpr_kernarg_segment_ptr 1"); A("  .amdhsa_system_sgpr_workgroup_id_x 1"); A(".end_amdhsa_kernel")
    return "\n".join(L) + "\n"

variants = {
 "m5_idle": dict(nper=0),
 "m5_load": dict(nper=16),
 "m5_load_pf": dict(nper=16, prefetch=True),
 "m5_idle_pf": dict(nper=0, prefetch=True),
 "m5_late": dict(nper=16, delay=450),
 "m5_late_pf": dict(nper=16, delay=450, prefetch=True),
}
for k, v in variants.items():
    open(f"work/{k}.s", "w").write(gen(**v))
print(" ".join(f"work/{k}.s" for k in variants))
print(", ".join(f'"work/{k}.s"' for k in variants))
```

```python
KNAME = "parallel_sum__sliding_block_cached__glu_gated_glu__decode_kernel"
HDR = open("parallel_sum__sliding_block_cached__glu_gated_glu__decode.s.ref").read().split("; Override launch")[0]

def gen(nw=16, vg=128, prio=0, probe_wave=15, delay=20, nper=16, throttle=0, warm=False, selfstore=None):
    L = []
    A = L.append
    A(HDR.rstrip())
    A(f"; @launch grid=(256,1,1) block=({nw*64},1,1) lds=0")
    A('.amdgcn_target "amdgcn-amd-amdhsa--gfx950"')
    A(".text"); A(f".globl {KNAME}"); A(".p2align 8"); A(f".type {KNAME},@function"); A(f"{KNAME}:")
    A("s_cmp_ge_u32 s2, 256"); A("s_cbranch_scc1 L_end")
    A("s_memrealtime s[80:81]")
    A("s_load_dwordx4 s[4:7], s[0:1], 8")
    A("s_load_dwordx2 s[46:47], s[0:1], 88")
    A("v_lshrrev_b32 v1, 6, v0")
    A("s_nop 0")
    A("v_readfirstlane_b32 s3, v1")
    A("v_and_b32 v2, 63, v0")
    A("s_and_b32 s50, s2, 31")
    A("s_lshr_b32 s51, s2, 5")
    A("s_waitcnt lgkmcnt(0)")
    def srd(d, b, size):
        A(f"s_mov_b32 s{d}, s{b}"); A(f"s_mov_b32 s{d+1}, s{b+1}"); A(f"s_mov_b32 s{d+2}, {size}"); A(f"s_mov_b32 s{d+3}, 0x00020000")
    srd(16, 4, 0x10000000); srd(20, 6, 0x10000000); srd(52, 46, 0x40000000)
    A("s_lshl_b32 s56, s50, 23"); A("s_add_u32 s56, s56, 0x700000")
    A("s_lshl_b32 s57, s51, 17"); A("s_add_u32 s56, s56, s57")
    A("v_lshlrev_b32 v3, 4, v2")
    A("s_mul_i32 s58, s2, 37")
    A(f"s_cmp_eq_u32 s3, {probe_wave}"); A("s_cbranch_scc1 L_probe")
    reg = 16
    cnt = 0
    for srd_ in ("s[16:19]", "s[20:23]"):
        for n in range(nper // 2):
            A(f"s_add_u32 s59, s3, {n*nw}")
            A("s_add_u32 s59, s59, s58"); A("s_and_b32 s59, s59, 127"); A("s_lshl_b32 s59, s59, 10"); A("s_add_u32 s59, s59, s56")
            if throttle and cnt >= throttle:
                A(f"s_waitcnt vmcnt({throttle-1})")
            A(f"buffer_load_dwordx4 v[{reg}:{reg+3}], v3, {srd_}, s59 offen nt"); reg += 4; cnt += 1
    A("s_waitcnt vmcnt(0)")
    A("s_branch L_fin")
    A("L_probe:")
    if prio: A(f"s_setprio {prio}")
    A("s_lshl_b32 s59, s2, 10")
    if warm:
        A("buffer_load_dwordx4 v[16:19], v3, s[52:55], s59 offen")
        A("s_waitcnt vmcnt(0)")
    for i in range(delay): A("s_sleep 1")
    A("s_lshl_b32 s59, s2, 10")
    A("s_memrealtime s[80:81]")
    A("s_waitcnt lgkmcnt(0)")
    if selfstore is not None:
        A(f"buffer_store_dwordx4 v[16:19], v3, s[52:55], s59 offen{selfstore}")
        A("s_waitcnt vmcnt(0)")
    else:
        A("buffer_load_dwordx4 v[16:19], v3, s[52:55], s59 offen sc1")
        A("s_waitcnt vmcnt(0)")
    A("L_fin:")
    A("s_memrealtime s[82:83]")
    A("s_waitcnt lgkmcnt(0)")
    A(f"s_mul_i32 s59, s2, {nw}"); A("s_add_u32 s59, s59, s3"); A("s_lshl_b32 s59, s59, 4"); A("s_add_u32 s59, s59, 0x20000000")
    A("v_mov_b32 v8, s80"); A("v_mov_b32 v9, s81"); A("v_mov_b32 v10, s82"); A("v_mov_b32 v11, s83")
    A("v_mov_b32 v12, 0")
    A("v_cmp_eq_u32 vcc, 0, v2"); A("s_and_saveexec_b64 s[60:61], vcc")
    A("buffer_store_dwordx4 v[8:11], v12, s[52:55], s59 offen")
    A("L_end:")
    A("s_endpgm")
    A('.section .rodata,"a"'); A(".p2align 6"); A(f".amdhsa_kernel {KNAME}")
    A(f"  .amdhsa_next_free_vgpr {vg}"); A("  .amdhsa_next_free_sgpr 96"); A(f"  .amdhsa_accum_offset {vg}")
    A("  .amdhsa_group_segment_fixed_size 0"); A("  .amdhsa_kernarg_size 96"); A("  .amdhsa_user_sgpr_count 2")
    A("  .amdhsa_user_sgpr_kernarg_segment_ptr 1"); A("  .amdhsa_system_sgpr_workgroup_id_x 1"); A(".end_amdhsa_kernel")
    return "\n".join(L) + "\n"

variants = {
 "m6_cold": dict(prio=3, delay=60),
 "m6_warm": dict(prio=3, delay=60, warm=True),
 "m6_warm_idle": dict(prio=3, delay=60, warm=True, nper=0),
 "m6_st_plain": dict(prio=3, delay=60, selfstore=""),
 "m6_st_sc1": dict(prio=3, delay=60, selfstore=" sc1"),
 "m6_st_plain_idle": dict(prio=3, delay=60, selfstore="", nper=0),
 "m6_st_sc1_idle": dict(prio=3, delay=60, selfstore=" sc1", nper=0),
}
for k, v in variants.items():
    open(f"work/{k}.s", "w").write(gen(**v))
print(" ".join(f"work/{k}.s" for k in variants))
print(", ".join(f'"work/{k}.s"' for k in variants))
```
